```python
import torch

def _softmax(x, axis=-1):
    return torch.softmax(x, dim=axis)
def _gelu(x):
    return torch.nn.functional.gelu(x, approximate="tanh")
def _silu(x):
    return torch.nn.functional.silu(x)
def _sigmoid(x):
    return torch.sigmoid(x)
def _layernorm(x, axis=-1, eps=1e-5):
    m = x.mean(dim=axis, keepdim=True)
    v = x.var(dim=axis, keepdim=True, unbiased=False)
    return (x - m) / torch.sqrt(v + eps)
def _scatter_add(tgt, idx, src, axis=0):
    return tgt.clone().index_add_(axis, idx, src)
def _segment_sum(src, seg, n):
    out = torch.zeros((n,) + src.shape[1:], dtype=src.dtype)
    return out.index_add_(0, seg, src)
def _pad(x, pw):
    flat = tuple(v for pair in reversed(pw) for v in pair)
    return torch.nn.functional.pad(x, flat)

kernel_name = 'parallel_sum__gqa_block_cached__glu_gated_swiglu__decode'

def setup_inputs():

    _w = (lambda a: (lambda t: t.to(torch.bfloat16) if t.is_floating_point() else t)(torch.as_tensor(a)))
    def _A_setup():
        B, Sq, D = 2, 1, 448
        Hq, Hkv, Sk, Dh = 16, 8, 32768, 256
        assert Hq % Hkv == 0, (Hq, Hkv)
        return {
            "x": _w((lambda *s: torch.randn(*s, dtype=torch.bfloat16) * 0.05)(B, Sq, D)),
            "k_cache": _w((lambda *s: torch.randn(*s, dtype=torch.bfloat16) * 3.2)(B, Hkv, Sk, Dh)),
            "v_cache": _w((lambda *s: torch.randn(*s, dtype=torch.bfloat16) * 1.6)(B, Hkv, Sk, Dh)),
            "wq": _w((lambda *s: torch.randn(*s, dtype=torch.bfloat16) * 3.2)(D, Hq * Dh) * (D ** -0.5)),
            "wo": _w((lambda *s: torch.randn(*s, dtype=torch.bfloat16) * 1.6)(Hq * Dh, D) * ((Hq * Dh) ** -0.5)),
        }
    _A_in = _A_setup()

    def _B_setup():
        B, S, D, F = 2, 1, 448, 1792
        return {
            "x": _w((lambda *s: torch.randn(*s, dtype=torch.bfloat16) * 0.05)(B, S, D)),
            "w1": _w((lambda *s: torch.randn(*s, dtype=torch.bfloat16) * 1.6)(D, F) * (2.0 / D) ** 0.5),
            "w3": _w((lambda *s: torch.randn(*s, dtype=torch.bfloat16) * 1.6)(D, F) * (2.0 / D) ** 0.5),
            "w2": _w((lambda *s: torch.randn(*s, dtype=torch.bfloat16) * 1.6)(F, D) * (2.0 / F) ** 0.5),
        }
    _B_in = _B_setup()

    return {
        "A_x": _A_in["x"],
        "A_k_cache": _A_in["k_cache"],
        "A_v_cache": _A_in["v_cache"],
        "A_wq": _A_in["wq"],
        "A_wo": _A_in["wo"],
        "B_x": _B_in["x"],
        "B_w1": _B_in["w1"],
        "B_w3": _B_in["w3"],
        "B_w2": _B_in["w2"],
    }

def reference(A_x, A_k_cache, A_v_cache, A_wq, A_wo, B_x, B_w1, B_w3, B_w2):
    def _A_ref(x, k_cache, v_cache, wq, wo):
        B, Sq, D = x.shape
        Hq, Dh = 16, 256
        Hkv = k_cache.shape[1]
        rep = Hq // Hkv
        q = (lambda x, *d: x.permute(*d))((x @ wq).reshape(B, Sq, Hq, Dh), 0, 2, 1, 3)
        k = (lambda x, n, axis: torch.repeat_interleave(x, n, dim=axis))(k_cache, rep, axis=1)
        v = (lambda x, n, axis: torch.repeat_interleave(x, n, dim=axis))(v_cache, rep, axis=1)
        scores = torch.einsum("bhqd,bhkd->bhqk", q, k) * (Dh ** -0.5)
        p = _softmax(scores, axis=-1)
        o = torch.einsum("bhqk,bhkd->bhqd", p, v)
        return (lambda x, *d: x.permute(*d))(o, 0, 2, 1, 3).reshape(B, Sq, Hq * Dh) @ wo

    def _B_ref(x, w1, w3, w2):
        gate = torch.einsum("bsd,df->bsf", x, w1)
        up = torch.einsum("bsd,df->bsf", x, w3)
        h = _silu(gate) * up
        out = torch.einsum("bsf,fd->bsd", h, w2)
        return out

    x = A_x
    xn = _layernorm(x, axis=-1)
    return x + _A_ref(xn, A_k_cache, A_v_cache, A_wq, A_wo) + _B_ref(xn, B_w1, B_w3, B_w2)
```

```python
import re

TRANS = ("v_exp_f32", "v_log_f32", "v_rcp_f32", "v_rsq_f32", "v_sqrt_f32", "v_sin_f32", "v_cos_f32", "v_rcp_iflag_f32")
DPP_RE = re.compile(r"\b(quad_perm|row_ror|row_shr|row_shl|row_bcast|row_mirror|row_half_mirror|row_newbcast|wave_shr|wave_shl|wave_ror|wave_rol)\b")
REG_RE = re.compile(r"\b([vas])(\d+)\b|\b([vas])\[(\d+):(\d+)\]|\b(vcc|exec|m0|vcc_lo|vcc_hi|exec_lo|exec_hi)\b")


def regs_of(op):
    out = set()
    for m in REG_RE.finditer(op):
        if m.group(1):
            out.add((m.group(1), int(m.group(2))))
        elif m.group(3):
            for i in range(int(m.group(4)), int(m.group(5)) + 1):
                out.add((m.group(3), i))
        else:
            n = m.group(6)
            out.add(("x", n[:4] if n.startswith("exec") else n[:3]))
    return out


def split_ops(s):
    ops, depth, cur = [], 0, ""
    for ch in s:
        if ch in "[(":
            depth += 1
        if ch in "])":
            depth -= 1
        if ch == "," and depth == 0:
            ops.append(cur.strip())
            cur = ""
        else:
            cur += ch
    if cur.strip():
        ops.append(cur.strip())
    return ops


class Ins:
    def __init__(self, text):
        self.text = text
        t = text.split(";")[0].strip()
        parts = t.split(None, 1)
        self.mn = parts[0]
        rest = parts[1] if len(parts) > 1 else ""
        ops = split_ops(rest)
        self.ops = ops
        mn = self.mn
        self.ws = 1
        self.cls = "other"
        self.w, self.r = set(), set()
        self.srcA = self.srcB = self.srcC = set()
        self.dpp = bool(DPP_RE.search(t))
        self.trans = any(mn.startswith(x) for x in TRANS)
        self.wide_store = False
        self.store_data = set()
        if mn == "s_nop":
            self.ws = int(ops[0], 0) + 1
            self.cls = "nop"
        elif mn.startswith("v_mfma"):
            self.cls = "mfma"
            self.w = regs_of(ops[0])
            self.srcA, self.srcB, self.srcC = regs_of(ops[1]), regs_of(ops[2]), regs_of(ops[3])
            self.r = self.srcA | self.srcB | self.srcC
            self.passes = 8 if "32x32" in mn else 4
        elif mn.startswith("v_"):
            self.cls = "valu"
            self.w = regs_of(ops[0])
            first_src = 1
            if "_co_" in mn or mn.startswith("v_div_scale") or mn.startswith("v_mad_u64"):
                self.w |= regs_of(ops[1])
                first_src = 2
            for o in ops[first_src:]:
                self.r |= regs_of(o)
            if mn.startswith("v_permlane") and "swap" in mn:
                self.w |= regs_of(ops[1])
                self.r |= regs_of(ops[0])
            if mn.startswith(("v_fmac", "v_dot2c", "v_pk_fmac", "v_writelane")) or self.dpp:
                self.r |= regs_of(ops[0])
            if mn.startswith("v_cndmask") and len(ops) == 3:
                self.r.add(("x", "vcc"))
            if mn.startswith("v_div_fmas"):
                self.r.add(("x", "vcc"))
            if mn.startswith("v_cmpx"):
                self.w.add(("x", "exec"))
        elif mn.startswith(("buffer_", "global_")):
            self.cls = "vmem"
            allr = [regs_of(o) for o in ops]
            if "load" in mn and " lds" not in t:
                self.w = allr[0]
                for x in allr[1:]:
                    self.r |= x
            else:
                for x in allr:
                    self.r |= x
                if "store" in mn:
                    self.store_data = allr[0] if mn.startswith("buffer_") else allr[1]
                    self.wide_store = mn.endswith(("x3", "x4"))
                if "atomic" in mn and " sc0" in t:
                    self.w = allr[0]
        elif mn.startswith("ds_"):
            self.cls = "ds"
            allr = [regs_of(o) for o in ops]
            if mn.startswith(("ds_read", "ds_bpermute", "ds_permute", "ds_swizzle")) or "_rtn" in mn:
                self.w = allr[0]
                for x in allr[1:]:
                    self.r |= x
            else:
                for x in allr:
                    self.r |= x
        elif mn.startswith("s_"):
            self.cls = "salu"
            if ops and not mn.startswith(("s_cmp", "s_cbranch", "s_branch", "s_waitcnt", "s_barrier", "s_sleep", "s_setprio", "s_endpgm", "s_setpc")):
                self.w = regs_of(ops[0])
                for o in ops[1:]:
                    self.r |= regs_of(o)
            else:
                for o in ops:
                    self.r |= regs_of(o)


def need(p, c):
    n = 0
    vw = {x for x in p.w if x[0] in "va"}
    sw = {x for x in p.w if x[0] == "s" or x == ("x", "vcc")}
    if p.cls == "valu":
        if c.cls == "mfma" and vw & c.r:
            n = max(n, 2)
        if c.cls == "valu" and c.dpp and vw & c.r:
            n = max(n, 2)
        if c.cls == "valu" and c.mn.startswith("v_permlane") and vw & c.r:
            n = max(n, 2)
        if c.cls == "valu" and c.mn.startswith(("v_readlane", "v_readfirstlane")) and vw & c.r:
            n = max(n, 1)
        if p.trans and vw & c.r and not c.trans:
            n = max(n, 1)
        if sw:
            if c.cls == "valu" and sw & c.r:
                n = max(n, 4 if c.mn.startswith(("v_readlane", "v_writelane", "v_div_fmas")) else 2)
            if c.cls == "vmem" and sw & c.r:
                n = max(n, 5)
            if c.cls == "salu" and sw & c.r:
                n = max(n, 1)
        if ("x", "exec") in p.w:
            if c.cls in ("valu", "mfma"):
                n = max(n, 5)
    if p.cls == "mfma":
        big = {4: 8, 8: 12}[p.passes]
        if c.cls == "valu" and (p.w & (c.r | c.w)):
            n = max(n, big)
        if c.cls in ("vmem", "ds") and (p.w & (c.r | c.w)):
            n = max(n, big)
        if c.cls == "mfma":
            if p.w & (c.srcA | c.srcB):
                n = max(n, big)
            if p.w & c.srcC:
                if not (p.w == c.srcC and p.passes == c.passes):
                    n = max(n, big - 2)
            elif p.w & c.w:
                n = max(n, big)
        if c.cls == "valu" and (p.srcC & c.w):
            n = max(n, {4: 3, 8: 7}[p.passes])
    if p.cls == "vmem" and p.wide_store and (p.store_data & c.w):
        n = max(n, 2)
    return n


class Asm:
    def __init__(self):
        self.lines = []
        self.hist = []
        self.nlabel = 0
        self.nnops = 0

    def raw(self, text):
        self.lines.append(text)

    def c(self, text):
        self.lines.append("    ; " + text)

    def __call__(self, text):
        for t in text.strip().split("\n"):
            t = t.strip()
            if not t:
                continue
            if t.startswith(";"):
                self.lines.append("    " + t)
                continue
            if t.endswith(":"):
                self.label(t[:-1])
                continue
            self._ins(t)

    def _ins(self, t):
        ins = Ins(t)
        dist, req = 0, 0
        for p in reversed(self.hist):
            k = need(p, ins)
            if k > dist:
                req = max(req, k - dist)
            dist += p.ws
            if dist >= 16:
                break
        while req > 0:
            k = min(req, 16)
            nop = Ins(f"s_nop {k-1}")
            self.lines.append(f"    s_nop {k-1}")
            self.hist.append(nop)
            self.nnops += 1
            req -= k
        self.lines.append("    " + t)
        self.hist.append(ins)
        if len(self.hist) > 40:
            self.hist = self.hist[-40:]
        if ins.mn in ("s_branch", "s_setpc_b64", "s_endpgm"):
            self.hist = []

    def label(self, name):
        self.lines.append(name + ":")

    def newlabel(self, base="L"):
        self.nlabel += 1
        return f"{base}_{self.nlabel}"

    def settle(self, n=12):
        self(f"s_nop {n-1}")

    def text(self):
        return "\n".join(self.lines) + "\n"
```

```python
import struct, sys
from asmlib import Asm

KNAME = "parallel_sum__gqa_block_cached__glu_gated_swiglu__decode_kernel"


def f32(x):
    return "0x%08x" % struct.unpack("<I", struct.pack("<f", x))[0]


LOG2E = 1.4426950408889634
C_EXP = 0.0625 * LOG2E

WS_QIN = 0x000000
WS_P1O = 0x100000
WS_P1ML = 0x200000
WS_Y = 0x300000
WS_YB = 0x400000
WS_POOL = 0x500000
WS_PROF = 0x800000
WS_SIZE = 0x1000000
L_SYNC = 0x0000
L_QF = 0x0100
L_XN = 0x1000
L_RED = 0x3000
L_H = 0x5000
L_CO = 0x6000
L_CML = 0x8000
LDS_BYTES = 0x8100

SPIN_MAX = 200000


def gen(DP=6, D=2, NS=52, NCL=2, WIN=8, prof=False, hprio=3, nt="nt", prof2=False, nopre=False):
    a = Asm()
    NT = 4096
    TPW = 256
    POOLW = TPW - 4 * NS
    assert POOLW % NCL == 0 and NS >= DP + NCL
    hdr = open("parallel_sum__gqa_block_cached__glu_gated_swiglu__decode.s.ref").read().split("\n")
    for l in hdr:
        if l.startswith("; @launch"):
            break
        a.raw(l)
    a.raw(f"; @launch grid=(256,1,1) block=(512,1,1) lds={LDS_BYTES}")
    a.raw('.amdgcn_target "amdgcn-amd-amdhsa--gfx950"')
    a.raw(".text")
    a.raw(f".globl {KNAME}")
    a.raw(".p2align 8")
    a.raw(f".type {KNAME},@function")
    a.raw(f"{KNAME}:")

    nst = [0]

    inq = [False]

    def stamp(i):
        if prof and not (prof2 and inq[0] and i not in (0,)):
            a(f"s_memrealtime s[{80+2*i}:{81+2*i}]")

    def stamp2(i):
        if prof2:
            a(f"s_memrealtime s[{80+2*i}:{81+2*i}]")

    def srd(base, ptr, nbytes, off=None):
        if off is None:
            a(f"s_mov_b32 s{base}, s{ptr}")
            a(f"s_mov_b32 s{base+1}, s{ptr+1}")
        else:
            a(f"s_add_u32 s{base}, s{ptr}, {off}")
            a(f"s_addc_u32 s{base+1}, s{ptr+1}, 0")
        a(f"s_mov_b32 s{base+2}, {nbytes}")
        a(f"s_mov_b32 s{base+3}, 0x00020000")

    DPPM = "row_mask:0xf bank_mask:0xf"

    def row_allreduce(op, regs):
        for k in (8, 4, 2, 1):
            for r in regs:
                a(f"{op}_dpp v{r}, v{r}, v{r} row_ror:{k} {DPPM}")

    def xrow_allreduce(op, regs, tmps):
        for sw in ("v_permlane16_swap_b32", "v_permlane32_swap_b32"):
            for r, t in zip(regs, tmps):
                a(f"v_mov_b32 v{t}, v{r}")
            for r, t in zip(regs, tmps):
                a(f"{sw} v{t}, v{r}")
            for r, t in zip(regs, tmps):
                a(f"{op} v{r}, v{t}, v{r}")

    a("s_cmp_ge_u32 s2, 256")
    a("s_cbranch_scc1 L_end")
    a("s_load_dwordx16 s[4:19], s[0:1], 0")
    a("s_load_dwordx8 s[20:27], s[0:1], 64")
    stamp(0)
    a("v_lshrrev_b32 v1, 6, v0")
    a("v_and_b32 v0, 63, v0")
    a("v_readfirstlane_b32 s28, v1")
    a("s_lshr_b32 s29, s2, 4")
    a("s_and_b32 s30, s2, 15")
    a("s_lshr_b32 s31, s2, 7")
    a("s_and_b32 s32, s29, 7")
    a(f"s_mov_b32 s62, {f32(C_EXP)}")
    a(f"s_mov_b32 s63, {f32(-C_EXP)}")
    a("s_mov_b32 s72, -1")
    a("s_mov_b32 s73, 0")
    a("s_and_b32 s58, s30, 7")
    a("s_cmp_eq_u32 s58, s32")
    a("s_cselect_b32 s34, 1, 0")
    a("s_cmp_ge_u32 s28, 4")
    a("s_cbranch_scc1 L_helper")

    def make_masks():
        a("v_and_b32 v1, 1, v0")
        a("v_lshlrev_b32 v1, 4, v1")
        a("v_mov_b32 v52, 0xffff")
        a("v_lshlrev_b32 v52, v1, v52")
        a("v_bfe_u32 v1, v0, 1, 2")
        for r in range(4):
            a(f"v_cmp_eq_u32 vcc, {r}, v1")
            a(f"v_cndmask_b32 v{4+r}, 0, v52, vcc")

    a.c("================ stream waves ================")
    a("v_bfe_u32 v2, v0, 2, 2")
    a("v_lshlrev_b32 v2, 9, v2")
    a("v_lshrrev_b32 v3, 4, v0")
    a("v_lshlrev_b32 v1, 6, v3")
    a("v_and_b32 v52, 3, v0")
    a("v_lshlrev_b32 v52, 4, v52")
    a("v_add3_u32 v2, v2, v1, v52")
    a("v_lshlrev_b32 v3, 9, v3")
    a("v_and_b32 v52, 15, v0")
    a("v_lshlrev_b32 v52, 4, v52")
    a("v_add_u32 v3, v3, v52")
    a("s_lshl_b32 s58, s29, 24")
    a("s_lshl_b32 s54, s30, 8")
    a("s_add_u32 s54, s54, s28")
    a("s_lshl_b32 s59, s54, 12")
    a("s_waitcnt lgkmcnt(0)")
    srd(36, 6, 1 << 24, "s58")
    srd(40, 8, 1 << 24, "s58")
    if nopre:
        a("s_barrier")
        a("s_barrier")
    else:
        a("s_cmp_eq_u32 s34, 0")
        a("s_cbranch_scc1 L_s_go")
        a("s_barrier")
        a.label("L_s_go")

    RING = 64
    seq = []

    def loadK(slot, soff):
        R = RING + 32 * slot
        for i, off in enumerate((0, 256, 2048, 2304)):
            a(f"buffer_load_dwordx4 v[{R+4*i}:{R+4*i+3}], v2, s[36:39], {soff} offen offset:{off} {nt}")

    def loadV(slot, soff):
        R = RING + 32 * slot + 16
        for i, off in enumerate((0, 256, 2048, 2304)):
            a(f"buffer_load_dwordx4 v[{R+4*i}:{R+4*i+3}], v3, s[40:43], {soff} offen offset:{off} {nt}")

    ngroups = 0
    for t in range(DP):
        for kv in "KV":
            if 4 * ngroups >= WIN + 4:
                a(f"s_waitcnt vmcnt({WIN})")
            (loadK if kv == "K" else loadV)(t, "s59")
            seq.append((t, kv))
            ngroups += 1
            if ngroups == 3:
                make_masks()
                a("v_mov_b32 v24, 0xff800000")
                a("v_mov_b32 v25, 0")
                a("v_mov_b32 v26, 0")
                for r in range(16, 24):
                    a(f"v_mov_b32 v{r}, 0")
                a("s_lshl_b32 s58, s29, 12")
                a(f"s_add_u32 s58, s58, {WS_POOL}")
                a("s_add_u32 s52, s26, s58")
                a("s_addc_u32 s53, s27, 0")
                srd(44, 26, WS_SIZE)
                a("v_lshlrev_b32 v27, 4, v0")
                if not nopre:
                    a("s_cmp_lg_u32 s34, 0")
                    a("s_cbranch_scc1 L_s_nob0")
                    a("s_barrier")
                    a.label("L_s_nob0")
        a("s_add_u32 s59, s59, 0x4000")
    a(f"s_add_u32 s54, s54, {4*DP}")
    a(f"s_mov_b32 s55, {NS-DP}")
    a("s_mov_b32 s56, 4")
    a("s_mov_b32 s77, 0")
    stamp(1)
    if not nopre:
        a("s_barrier")
    stamp(2)
    a(f"ds_read_b128 v[8:11], v27 offset:{L_QF}")
    a(f"ds_read_b128 v[12:15], v27 offset:{L_QF+1024}")
    a("s_waitcnt lgkmcnt(0)")

    def nxt(slot):
        Lh, Ls = a.newlabel("L_have"), a.newlabel("L_nocl")
        a("s_cmp_lg_u32 s55, 0")
        a(f"s_cbranch_scc1 {Lh}")
        a("s_waitcnt lgkmcnt(0)")
        a("s_and_b32 s54, s57, 15")
        a("s_lshl_b32 s54, s54, 8")
        a("s_lshr_b32 s58, s57, 4")
        a(f"s_mul_i32 s58, s58, {NCL}")
        a("s_add_u32 s54, s54, s58")
        a(f"s_add_u32 s54, s54, {4*NS}")
        a(f"s_mov_b32 s55, {NCL}")
        a("s_mov_b32 s56, 1")
        a(f"s_cmp_lt_u32 s58, {POOLW}")
        a(f"s_cbranch_scc1 {Lh}")
        a(f"s_mov_b32 s54, {NT}")
        a("s_mov_b32 s55, 0x10000")
        a("s_mov_b32 s56, 0")
        a.label(Lh)
        a(f"s_cmp_lg_u32 s55, {NCL}")
        a(f"s_cbranch_scc1 {Ls}")
        a("s_mov_b32 s57, 1")
        a("s_atomic_add s57, s[52:53], 0 glc")
        a.label(Ls)
        a(f"s_mov_b32 s{64+slot}, s54")
        a(f"s_lshl_b32 s{68+slot}, s54, 12")
        a("s_add_u32 s54, s54, s56")
        a("s_sub_u32 s55, s55, 1")

    def younger(item):
        i = len(seq) - 1 - seq[::-1].index(item)
        return 4 * (len(seq) - 1 - i)

    def wait_for(item, inloop):
        n0 = younger(item)
        a(f"s_waitcnt vmcnt({n0})")
        if not inloop:
            return
        zs = list(range(2, 2 * D, 2)) if item[1] == "K" else list(range(1, 2 * D, 2))
        L = a.newlabel("L_w")
        prev = 0
        for z in zs:
            a(f"s_cmp_eq_u32 s77, {prev}")
            a(f"s_cbranch_scc1 {L}")
            a(f"s_waitcnt vmcnt({n0-4*z})")
            prev = z
        a.label(L)

    def guarded(fn, slot, inloop):
        if not inloop:
            fn(slot, f"s{68+slot}")
            return
        L1, L2 = a.newlabel("L_ld"), a.newlabel("L_ldd")
        a(f"s_cmp_lt_u32 s{64+slot}, {NT}")
        a(f"s_cbranch_scc1 {L1}")
        a("s_add_u32 s77, s77, 1")
        a("s_nop 3")
        a(f"s_branch {L2}")
        a.label(L1)
        fn(slot, f"s{68+slot}")
        a.label(L2)

    def proc(tile, slot, issue_tile, inloop=False):
        R = RING + 32 * slot
        K = lambda u, j: f"v[{R+8*u+4*j}:{R+8*u+4*j+3}]"
        V = lambda u, j: f"v[{R+16+8*u+4*j}:{R+16+8*u+4*j+3}]"
        wait_for((tile, "K"), inloop)
        a(f"v_mfma_f32_16x16x32_bf16 v[28:31], {K(0,0)}, v[8:11], 0")
        a(f"v_mfma_f32_16x16x32_bf16 v[32:35], {K(1,0)}, v[8:11], 0")
        a(f"v_mfma_f32_16x16x32_bf16 v[28:31], {K(0,1)}, v[12:15], v[28:31]")
        a(f"v_mfma_f32_16x16x32_bf16 v[32:35], {K(1,1)}, v[12:15], v[32:35]")
        if issue_tile is not None:
            nxt(slot)
            guarded(loadK, slot, inloop)
            seq.append((issue_tile, "K"))
        else:
            a("s_nop 7")
        a(f"v_mov_b32_dpp v36, v28 quad_perm:[0,0,0,0] {DPPM}")
        a(f"v_mov_b32_dpp v37, v32 quad_perm:[0,0,0,0] {DPPM}")
        for k in (1, 2, 3):
            a(f"v_add_f32_dpp v36, v{28+k}, v36 quad_perm:[{k},{k},{k},{k}] {DPPM}")
            a(f"v_add_f32_dpp v37, v{32+k}, v37 quad_perm:[{k},{k},{k},{k}] {DPPM}")
        a("v_cvt_pk_bf16_f32 v38, v36, v37")
        a("v_lshlrev_b32 v39, 16, v38")
        a("v_and_b32 v40, 0xffff0000, v38")
        a("v_max_f32 v41, v39, v40")
        a("v_cmp_gt_f32 vcc, v41, v24")
        Lk = a.newlabel("L_nors")
        a(f"s_cbranch_vccz {Lk}")
        a("s_call_b64 s[60:61], L_rescale")
        a.label(Lk)
        a("v_fma_f32 v42, v39, s62, v26")
        a("v_fma_f32 v43, v40, s62, v26")
        a("v_exp_f32 v42, v42")
        a("v_exp_f32 v43, v43")
        a("v_cvt_pk_bf16_f32 v52, v42, v42")
        a("v_cvt_pk_bf16_f32 v53, v43, v43")
        a("v_add_f32 v25, v25, v42")
        for r in range(4):
            a(f"v_and_b32 v{44+r}, v52, v{4+r}")
        a("v_add_f32 v25, v25, v43")
        for r in range(4):
            a(f"v_and_b32 v{48+r}, v53, v{4+r}")
        wait_for((tile, "V"), inloop)
        a(f"v_mfma_f32_16x16x32_bf16 v[16:19], v[44:47], {V(0,0)}, v[16:19]")
        a(f"v_mfma_f32_16x16x32_bf16 v[20:23], v[44:47], {V(0,1)}, v[20:23]")
        a(f"v_mfma_f32_16x16x32_bf16 v[16:19], v[48:51], {V(1,0)}, v[16:19]")
        a(f"v_mfma_f32_16x16x32_bf16 v[20:23], v[48:51], {V(1,1)}, v[20:23]")
        if issue_tile is not None:
            guarded(loadV, slot, inloop)
            seq.append((issue_tile, "V"))

    for t in range(DP):
        proc(t, t, DP + t if t < D else None)
    a.label("L_loop")
    counts = []
    for rep in range(2):
        save = (len(a.lines), list(a.hist), a.nlabel)
        for d in range(D):
            t = DP + rep * D + d
            a(f"s_cmp_ge_u32 s{64+d}, {NT}")
            a("s_cbranch_scc1 L_sdone")
            proc(t, d, t + D, True)
        import re as _re
        body = [_re.sub(r"L_\w+", "L", l) for l in a.lines[save[0]:]]
        counts.append(body)
        if rep == 1:
            del a.lines[save[0]:]
    assert counts[0] == counts[1], (counts[0], counts[1])
    a("s_branch L_loop")

    a.label("L_rescale")
    a("s_nop 7")
    xrow_allreduce("v_max_f32", [41], [54])
    a("v_max_f32 v41, v41, v24")
    a("v_sub_f32 v54, v24, v41")
    a("v_mul_f32 v54, s62, v54")
    a("v_exp_f32 v54, v54")
    a("v_mov_b32 v24, v41")
    a("v_mul_f32 v26, s63, v41")
    a("v_mul_f32 v25, v25, v54")
    a("v_readlane_b32 s58, v54, 0")
    a("v_readlane_b32 s59, v54, 8")
    a("v_mov_b32 v55, s58")
    a("v_mov_b32 v56, s59")
    a("v_cndmask_b32 v55, v56, v55, s[72:73]")
    for r in range(16, 24):
        a(f"v_mul_f32 v{r}, v{r}, v55")
    a("s_nop 3")
    a("s_setpc_b64 s[60:61]")

    a.label("L_sdone")
    stamp(3)
    a("s_nop 7")
    xrow_allreduce("v_add_f32", [25], [54])
    a("v_bfe_u32 v1, v0, 3, 1")
    a("v_lshlrev_b32 v1, 3, v1")
    a("s_lshl_b32 s58, s28, 4")
    a("v_add_u32 v1, s58, v1")
    a(f"ds_write_b64 v1, v[24:25] offset:{L_CML}")
    a("s_lshl_b32 s58, s28, 11")
    a("v_add_u32 v1, s58, v27")
    a(f"ds_write_b128 v1, v[16:19] offset:{L_CO}")
    a(f"ds_write_b128 v1, v[20:23] offset:{L_CO+1024}")
    a("s_waitcnt lgkmcnt(0)")
    a("s_barrier")
    stamp(4)
    a("s_cmp_eq_u32 s28, 2")
    a("s_cbranch_scc1 L_finisher")
    a("s_cmp_eq_u32 s28, 3")
    a("s_cbranch_scc1 L_exit")
    a.c("---- waves 0,1: combine the four wave partials, publish P1 ----")
    a("v_lshrrev_b32 v1, 5, v0")
    a("v_lshlrev_b32 v1, 3, v1")
    for w in range(4):
        a(f"ds_read_b64 v[{64+2*w}:{65+2*w}], v1 offset:{L_CML+16*w}")
    a("s_lshl_b32 s58, s28, 10")
    a("v_add_u32 v2, s58, v27")
    for w in range(4):
        a(f"ds_read_b128 v[{72+4*w}:{75+4*w}], v2 offset:{L_CO+2048*w}")
    a("v_bfe_u32 v3, v0, 2, 2")
    a("v_add_u32 v3, v3, v1")
    a("v_lshlrev_b32 v3, 11, v3")
    a("v_and_b32 v52, 3, v0")
    a("v_lshlrev_b32 v52, 5, v52")
    a("v_bfe_u32 v53, v0, 4, 1")
    a("v_lshlrev_b32 v53, 4, v53")
    a("v_add3_u32 v3, v3, v52, v53")
    a("s_lshl_b32 s58, s29, 15")
    a("s_lshl_b32 s59, s28, 13")
    a("s_add_u32 s58, s58, s59")
    a("s_lshl_b32 s59, s30, 7")
    a("s_add_u32 s58, s58, s59")
    a(f"s_add_u32 s58, s58, {WS_P1O}")
    a("v_and_b32 v52, 3, v0")
    a("v_add_u32 v52, v52, v1")
    a("v_lshlrev_b32 v52, 7, v52")
    a("v_and_b32 v53, 28, v0")
    a("v_cmp_eq_u32 vcc, 0, v53")
    a("v_mov_b32 v53, 0x7fffff00")
    a("v_cndmask_b32 v52, v53, v52, vcc")
    a("s_lshl_b32 s59, s29, 11")
    a("s_lshl_b32 s64, s28, 9")
    a("s_add_u32 s59, s59, s64")
    a("s_lshl_b32 s64, s30, 3")
    a("s_add_u32 s59, s59, s64")
    a(f"s_add_u32 s59, s59, {WS_P1ML}")
    a("s_waitcnt lgkmcnt(4)")
    a("v_max3_f32 v90, v64, v66, v68")
    a("v_max_f32 v90, v90, v70")
    for w in range(4):
        a(f"v_sub_f32 v{92+w}, v{64+2*w}, v90")
    for w in range(4):
        a(f"v_mul_f32 v{92+w}, s62, v{92+w}")
    for w in range(4):
        a(f"v_exp_f32 v{92+w}, v{92+w}")
    a("v_mul_f32 v91, v92, v65")
    for w in range(1, 4):
        a(f"v_fmac_f32 v91, v{92+w}, v{65+2*w}")
    a("s_waitcnt lgkmcnt(0)")
    for r in range(4):
        a(f"v_mul_f32 v{96+r}, v92, v{72+r}")
    for w in range(1, 4):
        for r in range(4):
            a(f"v_fmac_f32 v{96+r}, v{92+w}, v{72+4*w+r}")
    for r in (90, 91, 96, 97, 98, 99):
        a(f"v_min_u32 v{r}, -2, v{r}")
    a("buffer_store_dwordx4 v[96:99], v3, s[44:47], s58 offen sc1")
    a("buffer_store_dwordx2 v[90:91], v52, s[44:47], s59 offen sc1")
    a("s_branch L_exit")

    a.label("L_finisher")
    a("s_and_b32 s58, s2, 127")
    a("s_lshr_b32 s64, s58, 2")
    a("s_cmp_ge_u32 s64, 28")
    a("s_cbranch_scc1 L_exit")
    a("s_bfe_u32 s59, s64, 0x20001")
    a("s_and_b32 s58, s58, 3")
    a("s_cmp_lg_u32 s58, s59")
    a("s_cbranch_scc1 L_exit")
    srd(48, 24, 256)
    srd(36, 4, 1792)
    srd(40, 22, 1792)
    a("v_lshlrev_b32 v1, 2, v0")
    a(f"s_mov_b32 s76, {SPIN_MAX}")
    a.label("L_fin_ack")
    a("buffer_load_dword v2, v1, s[48:51], 0 offen sc1")
    a("s_waitcnt vmcnt(0)")
    a("v_cmp_le_u32 vcc, 32, v2")
    a("s_and_b32 s58, vcc_lo, 0xff")
    a("s_cmp_eq_u32 s58, 0xff")
    a("s_cbranch_scc1 L_fin_go")
    a("s_sleep 4")
    a("s_sub_u32 s76, s76, 1")
    a("s_cmp_lg_u32 s76, 0")
    a("s_cbranch_scc1 L_fin_ack")
    a.label("L_fin_go")
    a("v_lshrrev_b32 v1, 2, v0")
    a("v_and_b32 v2, 3, v0")
    a("v_lshlrev_b32 v3, 11, v1")
    a("v_lshl_add_u32 v3, v2, 4, v3")
    a("v_lshlrev_b32 v8, 12, v1")
    a("v_lshl_add_u32 v8, v2, 4, v8")
    a("v_mov_b32 v9, 0x7fffff00")
    a("v_cmp_gt_u32 vcc, 14, v1")
    a("v_cndmask_b32 v8, v9, v8, vcc")
    a("s_lshl_b32 s58, s31, 18")
    a("s_lshl_b32 s59, s64, 6")
    a("s_add_u32 s58, s58, s59")
    a(f"s_add_u32 s58, s58, {WS_Y}")
    a("s_lshl_b32 s65, s31, 11")
    a("s_add_u32 s65, s65, s59")
    a(f"s_add_u32 s65, s65, {WS_YB}")
    a("s_mul_i32 s66, s31, 896")
    a("s_lshl_b32 s59, s64, 5")
    a("s_add_u32 s66, s66, s59")
    a("v_lshlrev_b32 v10, 3, v2")
    a("buffer_load_dwordx2 v[12:13], v10, s[36:39], s66 offen")
    a(f"s_mov_b32 s76, {SPIN_MAX}")
    a.label("L_fin_poll")
    a("s_mov_b32 s59, s58")
    for k in range(8):
        a(f"buffer_load_dwordx4 v[{64+4*k}:{67+4*k}], v3, s[44:47], s59 offen sc1")
        if k < 7:
            a("s_add_u32 s59, s59, 0x8000")
    a("buffer_load_dwordx4 v[96:99], v8, s[44:47], s65 offen sc1")
    a("s_waitcnt vmcnt(0)")
    a("v_max3_u32 v14, v64, v65, v66")
    for r in range(67, 99, 2):
        a(f"v_max3_u32 v14, v14, v{r}, v{r+1}")
    a("v_max_u32 v14, v14, v99")
    a("v_cmp_eq_u32 vcc, -1, v14")
    a("s_cbranch_vccz L_fin_sum")
    a("s_mov_b64 exec, vcc")
    a("s_sleep 2")
    a("s_sub_u32 s76, s76, 1")
    a("s_cmp_lg_u32 s76, 0")
    a("s_cbranch_scc1 L_fin_poll")
    a.label("L_fin_sum")
    a("s_mov_b64 exec, -1")
    stamp(5)
    for k in range(1, 8):
        for r in range(4):
            a(f"v_add_f32 v{64+r}, v{64+r}, v{64+4*k+r}")
    regs = [64, 65, 66, 67, 96, 97, 98, 99]
    for k in (8, 4):
        for r in regs:
            a(f"v_add_f32_dpp v{r}, v{r}, v{r} row_ror:{k} {DPPM}")
    xrow_allreduce("v_add_f32", regs, list(range(100, 108)))
    a("v_cvt_pk_bf16_f32 v16, v64, v65")
    a("v_cvt_pk_bf16_f32 v17, v66, v67")
    a("v_cvt_pk_bf16_f32 v18, v96, v97")
    a("v_cvt_pk_bf16_f32 v19, v98, v99")
    for p in range(2):
        a(f"v_lshlrev_b32 v20, 16, v{12+p}")
        a(f"v_and_b32 v21, 0xffff0000, v{12+p}")
        a(f"v_lshlrev_b32 v22, 16, v{16+p}")
        a(f"v_and_b32 v23, 0xffff0000, v{16+p}")
        a("v_add_f32 v20, v20, v22")
        a("v_add_f32 v21, v21, v23")
        a("v_cvt_pk_bf16_f32 v24, v20, v21")
        a("v_lshlrev_b32 v20, 16, v24")
        a("v_and_b32 v21, 0xffff0000, v24")
        a(f"v_lshlrev_b32 v22, 16, v{18+p}")
        a(f"v_and_b32 v23, 0xffff0000, v{18+p}")
        a("v_add_f32 v20, v20, v22")
        a("v_add_f32 v21, v21, v23")
        a(f"v_cvt_pk_bf16_f32 v{26+p}, v20, v21")
    a("v_mov_b32 v9, 0x7fffff00")
    a("v_cmp_gt_u32 vcc, 4, v0")
    a("v_cndmask_b32 v10, v9, v10, vcc")
    a("buffer_store_dwordx2 v[26:27], v10, s[40:43], s66 offen")
    a("s_branch L_exit")

    a.label("L_helper")
    inq[0] = True
    a.c("================ helper waves ================")
    if hprio:
        a(f"s_setprio {hprio}")
    a("s_sub_u32 s33, s28, 4")
    make_masks()
    a("v_and_b32 v2, 15, v0")
    a("v_lshrrev_b32 v3, 4, v0")
    a("v_lshlrev_b32 v27, 4, v0")
    a("v_mov_b32 v9, 0x7fffff00")
    a("s_mov_b32 s74, 0x01000100")
    a("s_mov_b32 s75, 0x03020302")
    a("s_add_u32 s58, s29, 4")
    a("s_and_b32 s58, s58, 7")
    a("s_cmp_eq_u32 s58, s30")
    a("s_cselect_b32 s35, 1, 0")
    a("s_cmp_lt_u32 s29, 14")
    a("s_cselect_b32 s35, s35, 0")
    a("v_mov_b32 v8, 0")
    a("s_cmp_lg_u32 s33, 0")
    a("s_cbranch_scc1 L_h_noinit")
    a("v_lshlrev_b32 v1, 2, v0")
    a(f"ds_write_b32 v1, v8 offset:{L_SYNC}")
    a.label("L_h_noinit")
    a("s_waitcnt lgkmcnt(0)")
    srd(44, 26, WS_SIZE)
    srd(48, 24, 256)
    srd(40, 4, 1792)
    a("s_cmp_lg_u32 s33, 1")
    a("s_cbranch_scc1 L_h_noclear")
    a.c("---- hw1: clear this workgroup's hand-off slots ----")
    for r in range(12, 16):
        a(f"v_mov_b32 v{r}, -1")
    a("s_lshl_b32 s58, s2, 10")
    a(f"s_add_u32 s58, s58, {WS_QIN}")
    a("buffer_store_dwordx4 v[12:15], v27, s[44:47], s58 offen sc1")
    a("v_lshrrev_b32 v1, 3, v0")
    a("v_lshlrev_b32 v1, 11, v1")
    a("v_and_b32 v10, 7, v0")
    a("v_lshl_add_u32 v1, v10, 4, v1")
    a("s_lshl_b32 s58, s29, 15")
    a("s_lshl_b32 s59, s30, 7")
    a("s_add_u32 s58, s58, s59")
    a(f"s_add_u32 s58, s58, {WS_P1O}")
    a("buffer_store_dwordx4 v[12:15], v1, s[44:47], s58 offen sc1")
    a("s_add_u32 s58, s58, 0x4000")
    a("buffer_store_dwordx4 v[12:15], v1, s[44:47], s58 offen sc1")
    a("v_lshlrev_b32 v1, 7, v0")
    a("v_cmp_gt_u32 vcc, 16, v0")
    a("v_cndmask_b32 v1, v9, v1, vcc")
    a("s_lshl_b32 s58, s29, 11")
    a("s_lshl_b32 s59, s30, 3")
    a("s_add_u32 s58, s58, s59")
    a(f"s_add_u32 s58, s58, {WS_P1ML}")
    a("buffer_store_dwordx2 v[12:13], v1, s[44:47], s58 offen sc1")
    a("s_lshl_b32 s58, s2, 11")
    a(f"s_add_u32 s58, s58, {WS_Y}")
    a("buffer_store_dwordx4 v[12:15], v27, s[44:47], s58 offen sc1")
    a("buffer_store_dwordx4 v[12:15], v27, s[44:47], s58 offen offset:1024 sc1")
    a("s_cmp_eq_u32 s35, 0")
    a("s_cbranch_scc1 L_h_noyb")
    a("s_lshl_b32 s58, s29, 12")
    a(f"s_add_u32 s58, s58, {WS_YB}")
    for k in range(4):
        a(f"buffer_store_dwordx4 v[12:15], v27, s[44:47], s58 offen offset:{1024*k} sc1")
    a.label("L_h_noyb")
    a("s_cmp_lg_u32 s30, 0")
    a("s_cbranch_scc1 L_h_noclear")
    a("s_lshl_b32 s58, s29, 12")
    a(f"s_add_u32 s58, s58, {WS_POOL}")
    a("buffer_store_dword v8, v8, s[44:47], s58 offen sc1")
    a.label("L_h_noclear")

    def load_x():
        a("v_cmp_gt_u32 vcc, 56, v0")
        a("v_cndmask_b32 v1, v9, v27, vcc")
        a("buffer_load_dwordx4 v[16:19], v1, s[40:43], 0 offen")
        a("buffer_load_dwordx4 v[20:23], v1, s[40:43], 0 offen offset:896")

    def strip_loads(ptr, nbytes, pitch, scol, dst):
        srd(36, ptr, nbytes)
        a(f"v_mul_u32_u24 v1, {28*pitch}, v3")
        a("v_lshl_add_u32 v1, v2, 4, v1")
        a(f"s_mul_i32 s58, s33, {112*pitch}")
        a(f"s_add_u32 s58, s58, {scol}")
        for i in range(28):
            a(f"buffer_load_dwordx4 v[{dst+4*i}:{dst+4*i+3}], v1, s[36:39], s58 offen {nt}")
            if i < 27:
                a(f"s_add_u32 s58, s58, {pitch}")

    def layernorm():
        X = 176
        for bb in range(2):
            for k in range(4):
                a(f"v_lshlrev_b32 v{X+8*bb+2*k}, 16, v{16+4*bb+k}")
                a(f"v_and_b32 v{X+8*bb+2*k+1}, 0xffff0000, v{16+4*bb+k}")
        for bb in range(2):
            a(f"v_add_f32 v{24+bb}, v{X+8*bb}, v{X+8*bb+1}")
        for k in range(2, 8):
            for bb in range(2):
                a(f"v_add_f32 v{24+bb}, v{24+bb}, v{X+8*bb+k}")
        row_allreduce("v_add_f32", [24, 25])
        xrow_allreduce("v_add_f32", [24, 25], [28, 29])
        a(f"s_mov_b32 s58, {f32(1.0/448)}")
        a("v_mul_f32 v24, s58, v24")
        a("v_mul_f32 v25, s58, v25")
        for bb in range(2):
            a(f"v_mov_b32 v{28+bb}, 0")
        for k in range(8):
            for bb in range(2):
                a(f"v_sub_f32 v{30+bb}, v{X+8*bb+k}, v{24+bb}")
            for bb in range(2):
                a(f"v_fmac_f32 v{28+bb}, v{30+bb}, v{30+bb}")
        a("v_cmp_gt_u32 vcc, 56, v0")
        a("v_cndmask_b32 v28, 0, v28, vcc")
        a("v_cndmask_b32 v29, 0, v29, vcc")
        row_allreduce("v_add_f32", [28, 29])
        xrow_allreduce("v_add_f32", [28, 29], [30, 31])
        a("v_mul_f32 v28, s58, v28")
        a("v_mul_f32 v29, s58, v29")
        a("v_cvt_pk_bf16_f32 v30, v28, v29")
        a("v_cvt_pk_bf16_f32 v31, v24, v25")
        a("v_lshlrev_b32 v28, 16, v30")
        a("v_and_b32 v29, 0xffff0000, v30")
        a("v_lshlrev_b32 v24, 16, v31")
        a("v_and_b32 v25, 0xffff0000, v31")
        a(f"v_add_f32 v28, {f32(1e-5)}, v28")
        a(f"v_add_f32 v29, {f32(1e-5)}, v29")
        a("v_cvt_pk_bf16_f32 v30, v28, v29")
        a("v_lshlrev_b32 v28, 16, v30")
        a("v_and_b32 v29, 0xffff0000, v30")
        a("v_sqrt_f32 v28, v28")
        a("v_sqrt_f32 v29, v29")
        a("v_cvt_pk_bf16_f32 v30, v28, v29")
        a("v_lshlrev_b32 v28, 16, v30")
        a("v_and_b32 v29, 0xffff0000, v30")
        a("v_rcp_f32 v30, v28")
        a("v_rcp_f32 v31, v29")
        for bb in range(2):
            for k in range(4):
                x0, x1 = X + 8 * bb + 2 * k, X + 8 * bb + 2 * k + 1
                a(f"v_sub_f32 v{x0}, v{x0}, v{24+bb}")
                a(f"v_sub_f32 v{x1}, v{x1}, v{24+bb}")
                a(f"v_cvt_pk_bf16_f32 v46, v{x0}, v{x1}")
                a(f"v_lshlrev_b32 v{x0}, 16, v46")
                a(f"v_and_b32 v{x1}, 0xffff0000, v46")
                a(f"v_mul_f32 v46, v{x0}, v{30+bb}")
                a(f"v_mul_f32 v47, v{x1}, v{30+bb}")
                a(f"v_fma_f32 v{x0}, -v46, v{28+bb}, v{x0}")
                a(f"v_fma_f32 v{x1}, -v47, v{28+bb}, v{x1}")
                a(f"v_fmac_f32 v46, v{x0}, v{30+bb}")
                a(f"v_fmac_f32 v47, v{x1}, v{30+bb}")
                a(f"v_cvt_pk_bf16_f32 v{16+4*bb+k}, v46, v47")
        a("s_lshl_b32 s58, s33, 11")
        a("v_add_u32 v1, s58, v27")
        a(f"ds_write_b128 v1, v[16:19] offset:{L_XN}")
        a(f"ds_write_b128 v1, v[20:23] offset:{L_XN+1024}")
        a("v_bfe_u32 v1, v0, 3, 1")
        a("v_lshlrev_b32 v1, 10, v1")
        a("v_mul_u32_u24 v10, 56, v3")
        a("s_mul_i32 s59, s33, 224")
        a("s_add_u32 s58, s58, s59")
        a("v_add3_u32 v1, v1, v10, s58")
        a("s_waitcnt lgkmcnt(0)")
        for k in range(7):
            a(f"ds_read_b64 v[{32+2*k}:{33+2*k}], v1 offset:{L_XN+8*k}")
        a("s_waitcnt lgkmcnt(0)")

    def diag_mfmas(n, pairs, bsrc, acc, waits=None):
        for i in range(n):
            t = 48 + 8 * (i & 1)
            a(f"v_perm_b32 v{t+4}, v{pairs+i//2}, v{pairs+i//2}, s{74+(i&1)}")
            for r in range(4):
                a(f"v_and_b32 v{t+r}, v{t+4}, v{4+r}")
            if waits is not None and waits(i) is not None:
                a(f"s_waitcnt vmcnt({waits(i)})")
            c = "0" if i == 0 else f"v[{acc}:{acc+3}]"
            a(f"v_mfma_f32_16x16x32_bf16 v[{acc}:{acc+3}], v[{t}:{t+3}], v[{bsrc+4*i}:{bsrc+4*i+3}], {c}")

    def helper_sync(word):
        L = a.newlabel("L_hs")
        Ld = a.newlabel("L_hsd")
        a("s_waitcnt lgkmcnt(0)")
        a("v_mov_b32 v10, 1")
        a(f"ds_add_u32 v8, v10 offset:{L_SYNC+4*word}")
        a(f"s_mov_b32 s76, {SPIN_MAX}")
        a.label(L)
        a(f"ds_read_b32 v10, v8 offset:{L_SYNC+4*word}")
        a("s_waitcnt lgkmcnt(0)")
        a("v_readfirstlane_b32 s58, v10")
        a("s_cmp_ge_u32 s58, 256")
        a(f"s_cbranch_scc1 {Ld}")
        a("s_sub_u32 s76, s76, 1")
        a("s_cmp_lg_u32 s76, 0")
        a(f"s_cbranch_scc1 {L}")
        a.label(Ld)

    def ack():
        L = a.newlabel("L_noack")
        a("s_cmp_lg_u32 s33, 1")
        a(f"s_cbranch_scc1 {L}")
        a("s_mov_b32 s58, 1")
        a("s_lshl_b32 s59, s32, 2")
        a("s_atomic_add s58, s[24:25], s59")
        a.label(L)

    a("s_cmp_eq_u32 s34, 0")
    a("s_cbranch_scc1 L_h_notq")
    a.c("---- q strip producer ----")
    load_x()
    a("s_lshl_b32 s64, s29, 1")
    a("s_lshr_b32 s58, s30, 3")
    a("s_add_u32 s64, s64, s58")
    a("s_lshl_b32 s65, s64, 8")
    strip_loads(10, 448 * 8192, 8192, "s65", 64)
    stamp2(1)
    a("s_barrier")
    a("s_waitcnt vmcnt(28)")
    stamp2(2)
    ack()
    layernorm()
    stamp2(3)
    a("s_waitcnt vmcnt(0)")
    stamp2(4)
    diag_mfmas(28, 32, 64, 12, waits=lambda i: 0 if i == 0 else None)
    stamp2(5)
    a("s_lshl_b32 s58, s33, 10")
    a("v_add_u32 v1, s58, v27")
    a(f"ds_write_b128 v1, v[12:15] offset:{L_RED}")
    helper_sync(0)
    for w in range(4):
        a(f"ds_read_b128 v[{64+4*w}:{67+4*w}], v27 offset:{L_RED+1024*w}")
    a("v_lshrrev_b32 v1, 5, v0")
    a("v_lshlrev_b32 v1, 17, v1")
    a("v_lshl_add_u32 v1, v2, 4, v1")
    a("v_and_b32 v10, 1, v3")
    a("v_lshl_add_u32 v1, v10, 3, v1")
    a("s_lshr_b32 s66, s64, 2")
    a("s_lshl_b32 s58, s66, 14")
    a("s_and_b32 s59, s64, 3")
    a("s_lshl_b32 s59, s59, 8")
    a("s_add_u32 s58, s58, s59")
    a("s_lshl_b32 s59, s33, 12")
    a("s_add_u32 s65, s58, s59")
    a(f"s_add_u32 s65, s65, {WS_QIN}")
    a("s_lshl_b32 s66, s66, 2")
    a("s_waitcnt lgkmcnt(0)")
    for w in range(1, 4):
        for r in range(4):
            a(f"v_add_f32 v{64+r}, v{64+r}, v{64+4*w+r}")
    a("v_cvt_pk_bf16_f32 v12, v64, v65")
    a("v_cvt_pk_bf16_f32 v13, v66, v67")
    a("v_min_u32 v12, -2, v12")
    a("v_min_u32 v13, -2, v13")
    stamp(1)
    stamp2(6)
    a(f"s_mov_b32 s76, {SPIN_MAX}")
    a.label("L_q_ack")
    a("buffer_load_dword v10, v8, s[48:51], s66 offen sc1")
    a("s_waitcnt vmcnt(0)")
    a("v_readfirstlane_b32 s58, v10")
    a("s_cmp_ge_u32 s58, 32")
    a("s_cbranch_scc1 L_q_push")
    a("s_sleep 1")
    a("s_sub_u32 s76, s76, 1")
    a("s_cmp_lg_u32 s76, 0")
    a("s_cbranch_scc1 L_q_ack")
    a.label("L_q_push")
    for k in range(4):
        a(f"buffer_store_dwordx2 v[12:13], v1, s[44:47], s65 offen offset:{1024*k} sc1")
    stamp(2)
    a("s_branch L_h_inbox")
    a.label("L_h_notq")
    a("s_barrier")
    a("s_waitcnt vmcnt(0)")
    ack()
    a.label("L_h_inbox")
    a("s_cmp_lg_u32 s33, 1")
    a("s_cbranch_scc1 L_h_b1")
    a.c("---- hw1: poll the q inbox, write B fragments to LDS ----")
    a("v_bfe_u32 v1, v0, 3, 1")
    a("v_lshlrev_b32 v1, 9, v1")
    a("v_lshl_add_u32 v1, v3, 6, v1")
    a("v_and_b32 v10, 3, v0")
    a("v_lshl_add_u32 v1, v10, 4, v1")
    a("s_lshl_b32 s58, s2, 10")
    a(f"s_add_u32 s58, s58, {WS_QIN}")
    a(f"s_mov_b32 s76, {SPIN_MAX}")
    a.label("L_in_poll")
    a("buffer_load_dwordx4 v[64:67], v1, s[44:47], s58 offen sc1")
    a("buffer_load_dwordx4 v[68:71], v1, s[44:47], s58 offen offset:256 sc1")
    a("s_waitcnt vmcnt(0)")
    a("v_max3_u32 v10, v64, v65, v66")
    a("v_max3_u32 v10, v10, v67, v68")
    a("v_max3_u32 v10, v10, v69, v70")
    a("v_max_u32 v10, v10, v71")
    a("v_cmp_eq_u32 vcc, -1, v10")
    a("s_cbranch_vccz L_in_done")
    a("s_mov_b64 exec, vcc")
    a("s_sleep 1")
    a("s_sub_u32 s76, s76, 1")
    a("s_cmp_lg_u32 s76, 0")
    a("s_cbranch_scc1 L_in_poll")
    a.label("L_in_done")
    a("s_mov_b64 exec, -1")
    a(f"ds_write_b128 v27, v[64:67] offset:{L_QF}")
    a(f"ds_write_b128 v27, v[68:71] offset:{L_QF+1024}")
    a("s_waitcnt lgkmcnt(0)")
    a.label("L_h_b1")
    stamp(3)
    a("s_barrier")
    a("s_cmp_eq_u32 s35, 0")
    a("s_cbranch_scc1 L_h_wo")
    a.c("---- FFN strip producer ----")
    load_x()
    a("s_lshl_b32 s65, s29, 8")
    strip_loads(16, 448 * 3584, 3584, "s65", 64)
    a("s_waitcnt vmcnt(28)")
    layernorm()
    diag_mfmas(28, 32, 64, 12, waits=lambda i: 0 if i == 0 else None)
    strip_loads(18, 448 * 3584, 3584, "s65", 64)
    diag_mfmas(28, 32, 64, 16, waits=lambda i: 0 if i == 0 else None)
    srd(36, 20, 1792 * 896)
    a(f"v_mul_u32_u24 v1, {32*896}, v3")
    a("v_lshl_add_u32 v1, v2, 4, v1")
    a(f"s_mul_i32 s58, s29, {128*896}")
    a("s_lshl_b32 s59, s33, 8")
    a("s_add_u32 s58, s58, s59")
    for i in range(32):
        a(f"buffer_load_dwordx4 v[{64+4*i}:{67+4*i}], v1, s[36:39], s58 offen {nt}")
        if i < 31:
            a("s_add_u32 s58, s58, 896")
    a("s_lshl_b32 s58, s33, 10")
    a("v_add_u32 v1, s58, v27")
    a(f"ds_write_b128 v1, v[12:15] offset:{L_RED}")
    a(f"ds_write_b128 v1, v[16:19] offset:{L_RED+4096}")
    helper_sync(1)
    G, U = 192, 208
    for w in range(4):
        a(f"ds_read_b128 v[{G+4*w}:{G+3+4*w}], v27 offset:{L_RED+1024*w}")
        a(f"ds_read_b128 v[{U+4*w}:{U+3+4*w}], v27 offset:{L_RED+4096+1024*w}")
    a("s_waitcnt lgkmcnt(0)")
    for w in range(1, 4):
        for r in range(4):
            a(f"v_add_f32 v{G+r}, v{G+r}, v{G+4*w+r}")
            a(f"v_add_f32 v{U+r}, v{U+r}, v{U+4*w+r}")
    for base in (G, U):
        for p in range(2):
            a(f"v_cvt_pk_bf16_f32 v10, v{base+2*p}, v{base+2*p+1}")
            a(f"v_lshlrev_b32 v{base+2*p}, 16, v10")
            a(f"v_and_b32 v{base+2*p+1}, 0xffff0000, v10")
    a(f"s_mov_b32 s58, {f32(-LOG2E)}")
    for r in range(4):
        a(f"v_mul_f32 v{G+4+r}, s58, v{G+r}")
    for r in range(4):
        a(f"v_exp_f32 v{G+4+r}, v{G+4+r}")
    for r in range(4):
        a(f"v_add_f32 v{G+4+r}, 1.0, v{G+4+r}")
    for r in range(4):
        a(f"v_rcp_f32 v{G+4+r}, v{G+4+r}")
    for r in range(4):
        a(f"v_mul_f32 v{G+r}, v{G+r}, v{G+4+r}")
    for p in range(2):
        a(f"v_cvt_pk_bf16_f32 v10, v{G+2*p}, v{G+2*p+1}")
        a(f"v_lshlrev_b32 v{G+2*p}, 16, v10")
        a(f"v_and_b32 v{G+2*p+1}, 0xffff0000, v10")
    for r in range(4):
        a(f"v_mul_f32 v{G+r}, v{G+r}, v{U+r}")
    a(f"v_cvt_pk_bf16_f32 v12, v{G}, v{G+1}")
    a(f"v_cvt_pk_bf16_f32 v13, v{G+2}, v{G+3}")
    a("v_lshrrev_b32 v1, 5, v0")
    a("v_lshlrev_b32 v1, 8, v1")
    a("v_lshl_add_u32 v1, v2, 4, v1")
    a("v_and_b32 v10, 1, v3")
    a("v_lshl_add_u32 v1, v10, 3, v1")
    a("s_lshl_b32 s58, s33, 9")
    a("v_add_u32 v1, s58, v1")
    a(f"ds_write_b64 v1, v[12:13] offset:{L_H}")
    a("v_bfe_u32 v1, v0, 3, 1")
    a("v_lshlrev_b32 v1, 8, v1")
    a("v_lshl_add_u32 v1, v3, 6, v1")
    a("v_add_u32 v1, s58, v1")
    a("s_waitcnt lgkmcnt(0)")
    for k in range(4):
        a(f"ds_read_b128 v[{32+4*k}:{35+4*k}], v1 offset:{L_H+16*k}")
    a("s_waitcnt lgkmcnt(0)")
    diag_mfmas(32, 32, 64, 12, waits=lambda i: 0 if i == 0 else None)
    a("v_lshrrev_b32 v1, 5, v0")
    a("v_lshlrev_b32 v1, 11, v1")
    a("v_lshl_add_u32 v1, v2, 5, v1")
    a("v_and_b32 v10, 1, v3")
    a("v_lshl_add_u32 v1, v10, 4, v1")
    a("s_lshl_b32 s58, s29, 12")
    a("s_lshl_b32 s59, s33, 9")
    a("s_add_u32 s58, s58, s59")
    a(f"s_add_u32 s58, s58, {WS_YB}")
    for r in range(12, 16):
        a(f"v_min_u32 v{r}, -2, v{r}")
    a("buffer_store_dwordx4 v[12:15], v1, s[44:47], s58 offen sc1")
    a.label("L_h_wo")
    a.c("---- wo fragments: rows 512*kvh + 32*s + 8*g4 + i, chunk 16*hw + n ----")
    srd(36, 12, 4096 * 896)
    a(f"v_mul_u32_u24 v1, {8*896}, v3")
    a("v_lshl_add_u32 v1, v2, 4, v1")
    a("s_and_b32 s58, s2, 127")
    a(f"s_mul_i32 s58, s58, {32*896}")
    a("s_lshl_b32 s59, s33, 8")
    a("s_add_u32 s58, s58, s59")
    for i in range(8):
        a(f"buffer_load_dwordx4 v[{64+4*i}:{67+4*i}], v1, s[36:39], s58 offen {nt}")
        if i < 7:
            a("s_add_u32 s58, s58, 896")
    a("v_lshlrev_b32 v1, 7, v2")
    a("v_lshl_add_u32 v1, v3, 5, v1")
    a("v_lshlrev_b32 v10, 3, v2")
    a("s_lshl_b32 s64, s2, 11")
    a(f"s_add_u32 s64, s64, {WS_P1O}")
    a("s_lshl_b32 s65, s2, 7")
    a(f"s_add_u32 s65, s65, {WS_P1ML}")
    a("v_lshlrev_b32 v11, 5, v2")
    a("v_lshl_add_u32 v11, v3, 4, v11")
    a("v_cmp_gt_u32 vcc, 32, v0")
    a("v_cndmask_b32 v11, v9, v11, vcc")
    a("s_lshl_b32 s66, s2, 11")
    a("s_lshl_b32 s59, s33, 9")
    a("s_add_u32 s66, s66, s59")
    a(f"s_add_u32 s66, s66, {WS_Y}")
    a(f"s_mov_b32 s76, {SPIN_MAX}")
    a("s_waitcnt vmcnt(0)")
    if hprio:
        a(f"s_setprio {hprio}")
    a("s_barrier")
    stamp(4)
    a.label("L_p1_poll")
    a("buffer_load_dwordx4 v[32:35], v1, s[44:47], s64 offen sc1")
    a("buffer_load_dwordx4 v[36:39], v1, s[44:47], s64 offen offset:16 sc1")
    a("buffer_load_dwordx2 v[40:41], v10, s[44:47], s65 offen sc1")
    a("s_waitcnt vmcnt(0)")
    a("v_max3_u32 v12, v32, v33, v34")
    a("v_max3_u32 v12, v12, v35, v36")
    a("v_max3_u32 v12, v12, v37, v38")
    a("v_max3_u32 v12, v12, v39, v40")
    a("v_max_u32 v12, v12, v41")
    a("v_cmp_eq_u32 vcc, -1, v12")
    a("s_cbranch_vccz L_p1_done")
    a("s_mov_b64 exec, vcc")
    a("s_sleep 1")
    a("s_sub_u32 s76, s76, 1")
    a("s_cmp_lg_u32 s76, 0")
    a("s_cbranch_scc1 L_p1_poll")
    a.label("L_p1_done")
    a("s_mov_b64 exec, -1")
    stamp(5)
    a("v_mov_b32 v12, v40")
    row_allreduce("v_max_f32", [12])
    a("v_sub_f32 v12, v40, v12")
    a("v_mul_f32 v12, s62, v12")
    a("v_exp_f32 v12, v12")
    for r in list(range(32, 40)) + [41]:
        a(f"v_mul_f32 v{r}, v{r}, v12")
    row_allreduce("v_add_f32", list(range(32, 40)) + [41])
    a("v_rcp_f32 v41, v41")
    for r in range(32, 40):
        a(f"v_mul_f32 v{r}, v{r}, v41")
    for p in range(4):
        a(f"v_cvt_pk_bf16_f32 v{42+p}, v{32+2*p}, v{33+2*p}")
    diag_mfmas(8, 42, 64, 12)
    for r in range(12, 16):
        a(f"v_min_u32 v{r}, -2, v{r}")
    a("buffer_store_dwordx4 v[12:15], v11, s[44:47], s66 offen sc1")

    a.label("L_exit")
    if prof:
        stamp(6)
        a("s_getreg_b32 s94, hwreg(HW_REG_XCC_ID, 0, 4)")
        srd(44, 26, WS_SIZE)
        a("s_lshl_b32 s58, s2, 3")
        a("s_add_u32 s58, s58, s28")
        a("s_lshl_b32 s58, s58, 5")
        a(f"s_add_u32 s58, s58, {WS_PROF}")
        a("s_waitcnt lgkmcnt(0)")
        a("s_mov_b64 exec, -1")
        for i in range(8):
            a(f"v_mov_b32 v{64+i}, s{80+2*i}")
        a("v_mov_b32 v1, 0")
        a("buffer_store_dwordx4 v[64:67], v1, s[44:47], s58 offen")
        a("buffer_store_dwordx4 v[68:71], v1, s[44:47], s58 offen offset:16")
    a.label("L_end")
    a("s_endpgm")
    a.raw('.section .rodata,"a"')
    a.raw(".p2align 6")
    a.raw(f".amdhsa_kernel {KNAME}")
    a.raw("  .amdhsa_next_free_vgpr 256")
    a.raw("  .amdhsa_next_free_sgpr 96")
    a.raw("  .amdhsa_accum_offset 256")
    a.raw("  .amdhsa_group_segment_fixed_size 0")
    a.raw("  .amdhsa_kernarg_size 96")
    a.raw("  .amdhsa_user_sgpr_count 2")
    a.raw("  .amdhsa_user_sgpr_kernarg_segment_ptr 1")
    a.raw("  .amdhsa_system_sgpr_workgroup_id_x 1")
    a.raw("  .amdhsa_float_denorm_mode_32 3")
    a.raw(".end_amdhsa_kernel")
    return a.text()


if __name__ == "__main__":
    open("k_a.s", "w").write(gen(NS=46))
    open("k_p.s", "w").write(gen(prof=True, NS=46))
    open("k_q.s", "w").write(gen(prof=True, prof2=True, NS=46))
    open("k_p2.s", "w").write(gen(prof=True, NS=46, nopre=True))
    open("k_q2.s", "w").write(gen(prof=True, prof2=True, NS=46, nopre=True))
```
